```python
import torch

def _softmax(x, axis=-1):
    return torch.softmax(x, dim=axis)
def _gelu(x):
    return torch.nn.functional.gelu(x, approximate="tanh")
def _silu(x):
    return torch.nn.functional.silu(x)
def _sigmoid(x):
    return torch.sigmoid(x)
def _layernorm(x, axis=-1, eps=1e-5):
    m = x.mean(dim=axis, keepdim=True)
    v = x.var(dim=axis, keepdim=True, unbiased=False)
    return (x - m) / torch.sqrt(v + eps)
def _scatter_add(tgt, idx, src, axis=0):
    return tgt.clone().index_add_(axis, idx, src)
def _segment_sum(src, seg, n):
    out = torch.zeros((n,) + src.shape[1:], dtype=src.dtype)
    return out.index_add_(0, seg, src)
def _pad(x, pw):
    flat = tuple(v for pair in reversed(pw) for v in pair)
    return torch.nn.functional.pad(x, flat)

kernel_name = 'standalone__instancenorm__sampling'

def setup_inputs():

    _w = (lambda a: (lambda t: t.to(torch.bfloat16) if t.is_floating_point() else t)(torch.as_tensor(a)))
    B, C, H, W = 16, 640, 16, 32
    return {
        "x": _w(abs((lambda *s: torch.randn(*s, dtype=torch.bfloat16) * 0.05)(B, C, H, W))),
        "g": _w((lambda *s: torch.randn(*s, dtype=torch.bfloat16) * 0.05)(C) + 1.0),
        "b": _w((lambda *s: torch.randn(*s, dtype=torch.bfloat16) * 0.4)(C)),
    }

def reference(x, g, b):
    mu = x.mean(axis=(-2, -1), keepdims=True)
    var = ((x - mu) ** 2).mean(axis=(-2, -1), keepdims=True)
    xhat = (x - mu) / torch.sqrt(var + 1e-5)
    return xhat * g.reshape(1, -1, 1, 1) + b.reshape(1, -1, 1, 1)
```

```python
import sys, argparse

HEADER = """; Kernarg layout for this problem (48 bytes, ptrs only, base s[0:1]):
"""
NAME = "standalone__instancenorm__sampling_kernel"
NINST = 10240
XBYTES = NINST * 1024

def gen_b(wpb=4, ng=1, ld="", st="", mimic=False, lds=0, stamp=False, sgb=False, st1="", wtk=0, stmask=0, sync=0, bk=0):
    inst_per_wg = 4 * wpb * ng
    nwg = NINST // inst_per_wg
    assert NINST % inst_per_wg == 0 and 640 % inst_per_wg == 0
    nxb = 640 // inst_per_wg
    magic = (1 << 32) // nxb + 1
    L = []
    A = L.append
    A(HEADER.rstrip())
    A(f"; @launch grid=({nwg},1,1) block=({64*wpb},1,1) lds={lds}")
    A('.amdgcn_target "amdgcn-amd-amdhsa--gfx950"')
    A(".text")
    A(f".globl {NAME}")
    A(".p2align 8")
    A(f".type {NAME},@function")
    A(f"{NAME}:")
    if stamp:
        A("    s_memrealtime s[40:41]")
        A("    s_load_dwordx2 s[48:49], s[0:1], 32")
    A("    s_load_dwordx4 s[4:7], s[0:1], 0")
    A("    s_load_dwordx4 s[8:11], s[0:1], 16")
    A(f"    s_cmp_ge_u32 s2, {nwg}")
    A("    s_cbranch_scc1 L_end")
    A("    v_lshrrev_b32 v2, 4, v0")
    A("    v_and_b32 v3, 15, v0")
    A("    v_lshlrev_b32 v1, 10, v2")
    A("    v_lshl_or_b32 v1, v3, 4, v1")
    if not sgb:
        A("    v_lshlrev_b32 v2, 1, v2")
    A(f"    s_mul_i32 s3, s2, {inst_per_wg*1024}")
    A(f"    s_mul_hi_u32 s28, s2, {magic}")
    A(f"    s_mul_i32 s28, s28, {nxb}")
    A("    s_sub_u32 s28, s2, s28")
    A(f"    s_mul_i32 s28, s28, {inst_per_wg*2}")
    if sgb:
        A("    v_lshrrev_b32 v4, 6, v0")
        A("    v_and_b32 v2, 0x30, v0")
        A("    v_readfirstlane_b32 s24, v4")
        A("    s_lshl_b32 s24, s24, 3")
        A("    s_add_u32 s28, s28, s24")
    A(f"    s_mov_b32 s14, {XBYTES}")
    A("    s_mov_b32 s15, 0x20000")
    A(f"    s_mov_b32 s18, {XBYTES}")
    A("    s_mov_b32 s19, 0x20000")
    if not sgb:
        A("    s_movk_i32 s22, 1280")
        A("    s_mov_b32 s23, 0x20000")
        A("    s_movk_i32 s26, 1280")
        A("    s_mov_b32 s27, 0x20000")
    A("    s_mov_b32 s29, 0xffff0000")
    for g in range(1, ng):
        A(f"    s_add_u32 s{30+g}, s3, {g*4096*wpb}")
    GB = 4
    for g in range(ng):
        if not sgb:
            A(f"    v_mov_b32 v{GB+2*g}, 0")
            A(f"    v_mov_b32 v{GB+2*g+1}, 0")
    R0 = GB + 2 * ng
    R0 = (R0 + 3) // 4 * 4
    U0 = R0 + 16 * ng
    T0 = U0 + 32
    A("    s_waitcnt lgkmcnt(0)")
    if stamp:
        A("    s_memrealtime s[42:43]")
    if stamp in (2, 3):
        A("    s_mov_b32 s50, 256")
        A("    s_mov_b32 s51, 0x20000")
    A("    s_mov_b32 s12, s4")
    A("    s_mov_b32 s13, s5")
    soff = lambda g: "s3" if g == 0 else f"s{30+g}"
    for g in range(ng):
        for k in range(4):
            r = R0 + 16 * g + 4 * k
            off = f" offset:{k*256}" if k else ""
            A(f"    buffer_load_dwordx4 v[{r}:{r+3}], v1, s[12:15], {soff(g)} offen{off}{ld}")
    A("    s_mov_b32 s16, s10")
    A("    s_mov_b32 s17, s11")
    if sgb:
        for g in range(ng):
            if g:
                A(f"    s_add_u32 s28, s28, {8*wpb}")
            A(f"    s_load_dwordx2 s[{56+4*g}:{57+4*g}], s[6:7], s28")
            A(f"    s_load_dwordx2 s[{58+4*g}:{59+4*g}], s[8:9], s28")
    else:
        A("    s_mov_b32 s20, s6")
        A("    s_mov_b32 s21, s7")
        A("    s_mov_b32 s24, s8")
        A("    s_mov_b32 s25, s9")
        for g in range(ng):
            off = f" offset:{g*8*wpb}" if g else ""
            A(f"    buffer_load_short_d16_hi v{GB+2*g}, v2, s[20:23], s28 offen{off}")
            A(f"    buffer_load_short_d16_hi v{GB+2*g+1}, v2, s[24:27], s28 offen{off}")
    if stamp in (2, 3):
        A("    s_cmp_lg_u32 s2, 0")
        A("    s_cbranch_scc1 L_not0")
        A("    s_or_b32 s40, s40, 1")
        A(f"    v_mov_b32 v{T0}, s40")
        A(f"    v_mov_b32 v{T0+1}, 0")
        A(f"    buffer_store_dword v{T0}, v{T0+1}, s[48:51], 0 offen sc0 sc1")
        A("    s_waitcnt vmcnt(0)")
        A("L_not0:")
    total_ld = 4 * ng + (0 if sgb else 2 * ng)
    nstores = 0
    a0, a1 = T0, T0 + 2
    m = T0 + 4
    sc = T0 + 6
    bb = T0 + 8
    t = T0 + 10
    def pk(op, d, s0, s1, s2=None, mods=""):
        if s2 is None:
            A(f"    {op} v[{d}:{d+1}], v[{s0}:{s0+1}], v[{s1}:{s1+1}]{mods}")
        else:
            A(f"    {op} v[{d}:{d+1}], v[{s0}:{s0+1}], v[{s1}:{s1+1}], v[{s2}:{s2+1}]{mods}")
    def rowreduce(x, tmp):
        A("    s_nop 1")
        A(f"    v_add_f32_dpp v{tmp}, v{x}, v{x} row_ror:8 row_mask:0xf bank_mask:0xf")
        A("    s_nop 1")
        A(f"    v_add_f32_dpp v{x}, v{tmp}, v{tmp} row_ror:4 row_mask:0xf bank_mask:0xf")
        A("    s_nop 1")
        A(f"    v_add_f32_dpp v{tmp}, v{x}, v{x} row_ror:2 row_mask:0xf bank_mask:0xf")
        A("    s_nop 1")
        A(f"    v_add_f32_dpp v{x}, v{tmp}, v{tmp} row_ror:1 row_mask:0xf bank_mask:0xf")
    for g in range(ng):
        R = R0 + 16 * g
        for k in range(4):
            idx = 4 * g + k
            outstanding_after = (total_ld - idx - 1) + nstores
            A(f"    s_waitcnt vmcnt({outstanding_after})")
            if stamp and g == 0 and k == 0:
                A("    s_memrealtime s[38:39]")
            if stamp and g == ng - 1 and k == 3:
                A("    s_memrealtime s[44:45]")
            if sync == 1 and k == 3:
                A(f"    buffer_load_dword v3, v1, s[12:15], {soff(g)} offen")
            if sync == 3 and k == 3:
                A(f"    s_cmp_lt_u32 s24, {bk*8}")
                A(f"    s_cbranch_scc1 L_nb0")
                A(f"    s_barrier")
                A(f"L_nb0:")
            for i in range(4 * k, 4 * k + 4):
                A(f"    v_lshlrev_b32 v{U0+2*i}, 16, v{R+i}")
                A(f"    v_and_b32 v{U0+2*i+1}, s29, v{R+i}")
            u = U0 + 8 * k
            if k == 0:
                pk("v_pk_add_f32", a0, u, u + 2)
                pk("v_pk_add_f32", a1, u + 4, u + 6)
            else:
                pk("v_pk_add_f32", a0, a0, u)
                pk("v_pk_add_f32", a1, a1, u + 2)
                pk("v_pk_add_f32", a0, a0, u + 4)
                pk("v_pk_add_f32", a1, a1, u + 6)
        pk("v_pk_add_f32", a0, a0, a1)
        A(f"    v_add_f32 v{a0}, v{a0}, v{a0+1}")
        rowreduce(a0, t)
        A(f"    v_mul_f32 v{m}, 0xbb000000, v{a0}")
        if mimic:
            A(f"    v_cvt_pk_bf16_f32 v{m}, v{m}, v{m}")
            A(f"    v_and_b32 v{m}, s29, v{m}")
        for i in range(16):
            u = U0 + 2 * i
            pk("v_pk_add_f32", u, u, m, mods=" op_sel_hi:[1,0]")
        pk("v_pk_mul_f32", a0, U0, U0)
        pk("v_pk_mul_f32", a1, U0 + 2, U0 + 2)
        for i in range(2, 16):
            u = U0 + 2 * i
            a = a0 if i % 2 == 0 else a1
            pk("v_pk_fma_f32", a, u, u, a)
        pk("v_pk_add_f32", a0, a0, a1)
        A(f"    v_add_f32 v{a0}, v{a0}, v{a0+1}")
        rowreduce(a0, t)
        if mimic:
            A(f"    v_mul_f32 v{t}, 0x3b000000, v{a0}")
            A(f"    v_cvt_pk_bf16_f32 v{t}, v{t}, v{t}")
            A(f"    v_and_b32 v{t}, s29, v{t}")
            A(f"    v_add_f32 v{t}, 0x3727c5ac, v{t}")
            A(f"    v_cvt_pk_bf16_f32 v{t}, v{t}, v{t}")
            A(f"    v_and_b32 v{t}, s29, v{t}")
            A(f"    v_sqrt_f32 v{t}, v{t}")
            A("    s_nop 0")
            A(f"    v_cvt_pk_bf16_f32 v{t}, v{t}, v{t}")
            A(f"    v_and_b32 v{t}, s29, v{t}")
            A(f"    v_rcp_f32 v{t}, v{t}")
        else:
            A(f"    v_mov_b32 v{t}, 0x3727c5ac")
            A(f"    v_fmac_f32 v{t}, 0x3b000000, v{a0}")
            A(f"    v_rsq_f32 v{t}, v{t}")
        gidx = 4 * ng + 2 * g + 1
        if sgb:
            A("    s_waitcnt lgkmcnt(0)")
            A(f"    v_lshrrev_b64 v[{a0}:{a0+1}], v2, s[{56+4*g}:{57+4*g}]")
            A(f"    v_lshrrev_b64 v[{a1}:{a1+1}], v2, s[{58+4*g}:{59+4*g}]")
            A(f"    v_lshlrev_b32 v{GB+2*g}, 16, v{a0}")
            A(f"    v_lshlrev_b32 v{GB+2*g+1}, 16, v{a1}")
        else:
            A(f"    s_waitcnt vmcnt({(total_ld - gidx - 1) + nstores})")
        A(f"    v_mul_f32 v{sc}, v{t}, v{GB+2*g}")
        gb = GB + 2 * g
        def tail(flags, dosync=True):
            for k in range(4):
                for i in range(4 * k, 4 * k + 4):
                    u = U0 + 2 * i
                    A(f"    v_pk_fma_f32 v[{u}:{u+1}], v[{u}:{u+1}], v[{sc}:{sc+1}], v[{gb}:{gb+1}] op_sel:[0,0,1] op_sel_hi:[1,0,1]")
                for i in range(4 * k, 4 * k + 4):
                    u = U0 + 2 * i
                    A(f"    v_cvt_pk_bf16_f32 v{R+i}, v{u}, v{u+1}")
                r = R + 4 * k
                off = f" offset:{k*256}" if k else ""
                if k == 0 and sync == 1 and dosync:
                    A("    s_waitcnt vmcnt(0)")
                if k == 0 and sync == 2:
                    A("    s_barrier")
                if k == 0 and sync == 3:
                    A(f"    s_cmp_ge_u32 s24, {bk*8}")
                    A(f"    s_cbranch_scc1 L_nb1")
                    A(f"    s_barrier")
                    A(f"L_nb1:")
                A(f"    buffer_store_dwordx4 v[{r}:{r+3}], v1, s[16:19], {soff(g)} offen{off}{flags[k]}")
        if wtk:
            A(f"    s_cmp_lt_u32 s24, {abs(wtk)*8}")
            A(f"    s_cbranch_scc{1 if wtk > 0 else 0} L_wt{g}")
            tail([st] * 4, bool(st))
            A(f"    s_branch L_j{g}")
            A(f"L_wt{g}:")
            tail([st1] * 4)
            A(f"L_j{g}:")
        else:
            tail([st1 if (stmask >> k) & 1 else st for k in range(4)])
        nstores += 4
    if stamp == 2 or stamp == 3:
        if stamp == 2:
            A("    s_waitcnt vmcnt(0)")
            A("    s_memrealtime s[52:53]")
        else:
            A("    s_waitcnt lgkmcnt(0)")
            A("    s_mov_b32 s52, s44")
        A("    s_mov_b64 exec, 1")
        A("    v_mov_b32 v1, 0")
        A("L_poll:")
        A("    buffer_load_dword v2, v1, s[48:51], 0 offen sc0 sc1")
        A("    s_waitcnt vmcnt(0) lgkmcnt(0)")
        A("    v_readfirstlane_b32 s54, v2")
        A("    s_cmp_eq_u32 s54, 0")
        A("    s_cbranch_scc1 L_poll")
        A("    s_sub_u32 s55, s52, s54")
        A("    s_min_u32 s55, s55, 3000")
        A("    s_mul_i32 s55, s55, 50")
        A("L_spin:")
        A("    s_sleep 8")
        A("    s_memrealtime s[52:53]")
        A("    s_waitcnt lgkmcnt(0)")
        A("    s_sub_u32 s53, s52, s54")
        A("    s_cmp_lt_u32 s53, s55")
        A("    s_cbranch_scc1 L_spin")
    if stamp == 4:
        A("    s_memrealtime s[46:47]")
        A("    s_waitcnt vmcnt(0)")
        A("    s_memrealtime s[52:53]")
        A("    s_load_dwordx2 s[48:49], s[0:1], 40")
        A("    s_getreg_b32 s54, hwreg(HW_REG_XCC_ID)")
        A("    s_getreg_b32 s55, hwreg(HW_REG_HW_ID)")
        A("    s_mov_b32 s50, 0x100000")
        A("    s_mov_b32 s51, 0x20000")
        A("    v_lshrrev_b32 v1, 6, v0")
        A(f"    s_mul_i32 s3, s2, {wpb}")
        A("    v_add_u32 v1, s3, v1")
        A("    v_lshlrev_b32 v1, 5, v1")
        A("    s_waitcnt lgkmcnt(0)")
        A("    s_mov_b64 exec, 1")
        for i, r in enumerate([40, 42, 38, 44, 46, 52, 54, 55]):
            A(f"    v_mov_b32 v{8+i}, s{r}")
        A("    buffer_store_dwordx4 v[8:11], v1, s[48:51], 0 offen")
        A("    buffer_store_dwordx4 v[12:15], v1, s[48:51], 0 offen offset:16")
    if stamp == 1:
        A("    s_memrealtime s[46:47]")
        A("    s_waitcnt vmcnt(0)")
        A("    s_memrealtime s[52:53]")
        A("    s_waitcnt lgkmcnt(0)")
        A("    s_mov_b32 s50, 256")
        A("    s_mov_b32 s51, 0x20000")
        A("    s_mov_b64 exec, 1")
        A("    v_mov_b32 v1, 0")
        for i, r in enumerate([40, 42, 44, 46, 52]):
            A(f"    s_not_b32 s54, s{r}")
            A(f"    v_mov_b32 v2, s54")
            A(f"    v_mov_b32 v3, s{r}")
            A(f"    buffer_atomic_umax v2, v1, s[48:51], 0 offen offset:{8*i}")
            A(f"    buffer_atomic_umax v3, v1, s[48:51], 0 offen offset:{8*i+4}")
            A("    s_waitcnt vmcnt(0)")
    A("L_end:")
    A("    s_endpgm")
    nv = t + 1
    nv4 = (nv + 3) // 4 * 4
    A('.section .rodata,"a"')
    A(".p2align 6")
    A(f".amdhsa_kernel {NAME}")
    A(f"  .amdhsa_next_free_vgpr {nv}")
    A(f"  .amdhsa_next_free_sgpr 72")
    A(f"  .amdhsa_accum_offset {nv4}")
    A("  .amdhsa_group_segment_fixed_size 0")
    A("  .amdhsa_kernarg_size 48")
    A("  .amdhsa_user_sgpr_count 2")
    A("  .amdhsa_user_sgpr_kernarg_segment_ptr 1")
    A("  .amdhsa_system_sgpr_workgroup_id_x 1")
    A("  .amdhsa_float_denorm_mode_32 3")
    A(".end_amdhsa_kernel")
    return "\n".join(L) + "\n"

if __name__ == "__main__":
    p = argparse.ArgumentParser()
    p.add_argument("--wpb", type=int, default=4)
    p.add_argument("--ng", type=int, default=1)
    p.add_argument("--ld", default="")
    p.add_argument("--st", default="")
    p.add_argument("--mimic", type=int, default=0)
    p.add_argument("--lds", type=int, default=0)
    p.add_argument("--stamp", type=int, default=0)
    p.add_argument("--sgb", type=int, default=1)
    p.add_argument("--st1", default="")
    p.add_argument("--wtk", type=int, default=0)
    p.add_argument("--stmask", type=int, default=0)
    p.add_argument("--sync", type=int, default=0)
    p.add_argument("--bk", type=int, default=8)
    p.add_argument("-o", default="-")
    a = p.parse_args()
    fl = lambda s: (" " + s.replace("+", " ")) if s else ""
    s = gen_b(a.wpb, a.ng, fl(a.ld), fl(a.st), bool(a.mimic), a.lds, a.stamp, bool(a.sgb), fl(a.st1), a.wtk, a.stmask, a.sync, a.bk)
    if a.o == "-":
        sys.stdout.write(s)
    else:
        open(a.o, "w").write(s)
```

```python
import sys, argparse, subprocess, re, os, tempfile
from gen import HEADER, NAME, NINST, XBYTES

def sizes(lines):
    src = '.amdgcn_target "amdgcn-amd-amdhsa--gfx950"\n.text\n' + "\n".join(lines) + "\n"
    with tempfile.TemporaryDirectory() as d:
        open(d + "/a.s", "w").write(src)
        subprocess.run(["clang", "-c", "-x", "assembler", "-target", "amdgcn-amd-amdhsa", "-mcpu=gfx950", d + "/a.s", "-o", d + "/a.o"], check=True)
        out = subprocess.run(["llvm-objdump", "-d", d + "/a.o"], capture_output=True, text=True).stdout
    offs = [int(m.group(1), 16) for m in re.finditer(r"// ([0-9A-F]{12}):", out)]
    res = []; i = 0
    for l in lines:
        res.append(offs[i] if i < len(offs) else None)
        if l.startswith("    "): i += 1
    assert i == len(offs), (i, len(offs))
    return res

def gen(a):
    fl = lambda s: (" " + s.replace("+", " ")) if s else ""
    st, ld = fl(a.st), fl(a.ld)
    wpb = a.wpb; ng = a.ng; nwg = 2560 // (wpb * ng); tpw = wpb * ng
    assert 160 % tpw == 0 and (160 // tpw) & (160 // tpw - 1) == 0
    stamp = a.stamp
    L = []; A = L.append
    GB = 4; R0 = 8; U0 = R0 + 16 * ng; T0 = U0 + 32
    if stamp: A("    s_memrealtime s[40:41]")
    if a.pcpf == 1:
        A("    s_getpc_b64 s[64:65]")
    A("    s_load_dwordx2 s[12:13], s[0:1], 0")
    if a.split:
        A("    s_bfe_u32 s90, s2, 0x10003")
        A("    s_and_b32 s3, s2, 7")
        A("    s_lshr_b32 s2, s2, 4")
        A("    s_lshl_b32 s2, s2, 3")
        A("    s_or_b32 s2, s2, s3")
    if a.half:
        A("    s_and_b32 s3, s2, 1")
        A("    s_cbranch_scc1 L_end")
        A("    s_lshr_b32 s2, s2, 1")
    A(f"    s_cmpk_ge_u32 s2, {0 if a.empty else nwg}")
    A("    s_cbranch_scc1 L_end")
    if a.pcpf == 1:
        for i in range(a.pcn):
            A(f"    s_load_dword s66, s[64:65], {128*(i+1)}")
    if a.loc:
        assert wpb == 10 and ng == 1
        A("    s_load_dwordx2 s[20:21], s[0:1], 40")
        A("    v_lshrrev_b32 v4, 6, v0")
        A("    s_lshr_b32 s25, s2, 3")
        A("    v_readfirstlane_b32 s24, v4")
        A("    s_lshl_b32 s25, s25, 2")
        A("    s_and_b32 s26, s2, 3")
        A("    s_add_u32 s25, s25, s26")
        A("    s_mul_i32 s25, s25, 5")
        A("    s_lshr_b32 s26, s24, 1")
        A("    s_add_u32 s25, s25, s26")
        A("    s_lshr_b32 s26, s25, 7")
        A(f"    s_add_u32 s26, s26, {8 if a.loc == 2 else 0}")
        A("    s_waitcnt lgkmcnt(0)")
        A("    s_load_dword s22, s[20:21], 128")
        A("    s_lshl_b32 s25, s25, 2")
        A("    s_and_b32 s27, s24, 1")
        A("    s_add_u32 s25, s25, s27")
        A("    s_lshr_b32 s27, s2, 2")
        A(f"    s_xor_b32 s27, s27, {1 ^ a.flip}")
        A("    v_and_b32 v0, 63, v0")
        A("    s_waitcnt lgkmcnt(0)")
        if a.loc == 3: A("    s_mov_b32 s22, 0")
        A("    s_lshr_b32 s22, s22, s26")
        if a.loc == 4:
            A("    s_lshr_b32 s23, s22, 8")
            A("    s_xor_b32 s23, s23, s27")
            A(f"    s_xor_b32 s23, s23, {a.flip ^ a.flip2}")
            A("    s_and_b32 s23, s23, 1")
            A("    s_lshl_b32 s23, s23, 1")
            A("    s_add_u32 s23, s25, s23")
            A("    s_lshl_b32 s23, s23, 12")
        A("    s_xor_b32 s22, s22, s27")
        A("    s_and_b32 s22, s22, 1")
        A("    s_lshl_b32 s22, s22, 1")
        A("    s_add_u32 s25, s25, s22")
        A("    s_lshl_b32 s3, s25, 12")
    else:
        A(f"    s_mul_i32 s3, s2, {tpw*4096}")
    for g in range(1, ng): A(f"    s_add_u32 s{30+g}, s3, {g*4096*wpb}")
    soff = lambda g: "s3" if g == 0 else f"s{30+g}"
    A("    s_lshl_b32 s14, 5, 21")
    A("    s_lshl_b32 s15, 1, 17")
    A("    v_and_b32 v3, 15, v0")
    if a.pcpf == 2:
        A("    s_getpc_b64 s[64:65]")
        A(f"    v_min_u32 v5, {a.pcn-1}, v3")
        A("    v_lshlrev_b32 v5, 7, v5")
        A("    global_load_dword v6, v5, s[64:65] offset:64")
    A("    v_lshlrev_b32 v1, 6, v0")
    A("    v_mul_u32_u24 v3, 48, v3")
    A("    v_sub_u32 v1, v1, v3")
    done = set()
    def once(x):
        if x not in done: done.add(x); A(x)
    def srds():
        once("    s_load_dwordx2 s[16:17], s[0:1], 24")
        if stamp: once("    s_load_dwordx2 s[48:49], s[0:1], 32")
        once("    s_mov_b32 s18, s14")
        once("    s_mov_b32 s19, s15")
        if stamp:
            once("    s_mov_b32 s50, 256")
            once("    s_mov_b32 s51, s15")
    def jumps():
        if a.slots: srds()
        if not a.loc: A("    v_lshrrev_b32 v4, 6, v0")
        A("    v_and_b32 v2, 0x30, v0")
        if not a.loc: A("    v_readfirstlane_b32 s24, v4")
        if a.slots:
            A("@JUMPS")
            A("L_back:")
    if a.jpos == 0: jumps()
    A("    s_waitcnt lgkmcnt(0)")
    if stamp and a.ev == "karg": A("    s_memrealtime s[42:43]")
    if a.split:
        A("    s_cmp_eq_u32 s90, 1")
        A("    s_cbranch_scc1 L_nold")
    for g in range(ng):
      for k in range(4):
        r = R0 + 16 * g + 4 * k
        off = f" offset:{k*256}" if k else ""
        if not a.nold: A(f"    buffer_load_dwordx4 v[{r}:{r+3}], v1, s[12:15], {soff(g)} offen{off}{ld}")
    if a.split:
        A("    s_waitcnt vmcnt(0)")
        A("    s_endpgm")
        A("L_nold:")
    if stamp and a.ev == "ldiss": A("    s_memrealtime s[42:43]")
    A("    s_load_dwordx4 s[4:7], s[0:1], 8")
    srds()
    if a.jpos == 1: jumps()
    if a.jpos == 2:
        A("    v_lshrrev_b32 v4, 6, v0")
        A("    v_and_b32 v2, 0x30, v0")
        A("    v_readfirstlane_b32 s24, v4")
    if a.loc:
        A(f"    s_mul_hi_u32 s28, s25, {(1 << 32) // 160 + 1}")
        A("    s_mul_i32 s28, s28, 160")
        A("    s_sub_u32 s28, s25, s28")
    else:
        A(f"    s_and_b32 s28, s2, {160//tpw-1}")
        A(f"    s_mul_i32 s28, s28, {tpw}")
        A("    s_add_u32 s28, s28, s24")
    A("    s_lshl_b32 s28, s28, 3")
    A("    s_mov_b32 s29, 0xffff0000")
    FA, FP, FO = T0 + 14, T0 + 15, T0 + 16
    if a.sync == 4:
        A(f"    v_lshlrev_b32 v{FA}, 2, v0")
        A(f"    v_mov_b32 v{FO}, 0")
        A(f"    v_and_b32 v{FP}, 63, v0")
        A(f"    ds_write_b32 v{FA}, v{FO}")
        A(f"    v_min_u32 v{FP}, {wpb-1}, v{FP}")
        A(f"    v_lshlrev_b32 v{FP}, 8, v{FP}")
    A("    s_waitcnt lgkmcnt(0)")
    if a.sync == 4: A(f"    v_mov_b32 v{FO}, 1")
    for g in range(ng):
        if g: A(f"    s_add_u32 s28, s28, {8*wpb}")
        A(f"    s_load_dwordx2 s[{68+4*g}:{69+4*g}], s[4:5], s28")
        A(f"    s_load_dwordx2 s[{70+4*g}:{71+4*g}], s[6:7], s28")
    if stamp == 2:
        A(f"    s_cmp_lg_u32 s2, {a.ref}")
        A("    s_cbranch_scc1 L_noref")
        A("    s_cmp_lg_u32 s24, 0")
        A("    s_cbranch_scc1 L_noref")
        A("    s_or_b32 s62, s40, 1")
        A(f"    v_mov_b32 v{T0}, s62")
        A(f"    v_mov_b32 v{T0+1}, 0")
        A(f"    buffer_store_dword v{T0}, v{T0+1}, s[48:51], 0 offen sc0 sc1")
        A("    s_waitcnt vmcnt(0)")
        A("L_noref:")
    if a.jpos == 2:
        A("@JUMPS")
        A("L_back:")
    if a.slots: A("    s_cmp_eq_u32 s15, 0")
    if a.mix == 9:
        A("    s_waitcnt vmcnt(0)")
        A("    s_endpgm")
    if a.mix:
        for g in range(ng):
            for k in range(4):
                off = f" offset:{k*256}" if k else ""
                if a.mix == 2: A(f"    s_waitcnt vmcnt({4*ng-1})")
                A(f"    buffer_store_dwordx4 v[{U0}:{U0+3}], v1, s[16:19], {'s23' if a.loc == 4 else soff(g)} offen{off}{st}")
        A("    s_waitcnt vmcnt(0)")
        A("    s_endpgm")
    A("@MAIN")
    a0, a1 = T0, T0 + 2
    q0, q1 = T0 + 4, T0 + 6
    m = T0 + 8; sc = T0 + 10; t = T0 + 12; nv = T0 + (17 if a.sync == 4 else 14)
    def pk(op, d, s0, s1, s2=None, mods=""):
        if s2 is None: A(f"    {op} v[{d}:{d+1}], v[{s0}:{s0+1}], v[{s1}:{s1+1}]{mods}")
        else: A(f"    {op} v[{d}:{d+1}], v[{s0}:{s0+1}], v[{s1}:{s1+1}], v[{s2}:{s2+1}]{mods}")
    def dppadd(d, s, n):
        A(f"    v_add_f32_dpp v{d}, v{s}, v{s} row_ror:{n} row_mask:0xf bank_mask:0xf")
    def gbsel(g):
        if g == 0: A("    s_waitcnt lgkmcnt(0)")
        A(f"    v_lshrrev_b64 v[{GB}:{GB+1}], v2, s[{68+4*g}:{69+4*g}]")
        A(f"    v_lshrrev_b64 v[{GB+2}:{GB+3}], v2, s[{70+4*g}:{71+4*g}]")
        A(f"    v_lshlrev_b32 v{GB}, 16, v{GB}")
        A(f"    v_lshlrev_b32 v{GB+1}, 16, v{GB+2}")
    nst = 0
    for g in range(ng):
        R = R0 + 16 * g
        xw = 0
        for k in range(4):
            A(f"    s_waitcnt vmcnt({4*(ng-g)-1-k+nst})")
            if a.sync == 4 and g == ng - 1 and k == a.sigk: A(f"    ds_write_b32 v{FA}, v{FO}")
            if stamp and g == 0 and k == 0 and a.ev == "data0": A("    s_memrealtime s[42:43]")
            if stamp and g == ng-1 and k == 3 and a.ev == "data": A("    s_memrealtime s[42:43]")
            for i in range(4 * k, 4 * k + 4):
                A(f"    v_lshlrev_b32 v{U0+2*i}, 16, v{R+i}")
                A(f"    v_and_b32 v{U0+2*i+1}, s29, v{R+i}")
                if k == 0 and i == 1:
                    A(f"    v_mov_b32_dpp v{m}, v{U0} row_newbcast:0 row_mask:0xf bank_mask:0xf")
            u = U0 + 8 * k
            for j in range(4):
                pk("v_pk_add_f32", u + 2 * j, u + 2 * j, m, mods=" op_sel_hi:[1,0] neg_lo:[0,1] neg_hi:[0,1]")
            if k == 0:
                pk("v_pk_add_f32", a0, u, u + 2)
                pk("v_pk_mul_f32", q0, u, u)
                pk("v_pk_add_f32", a1, u + 4, u + 6)
                pk("v_pk_mul_f32", q1, u + 2, u + 2)
                pk("v_pk_fma_f32", q0, u + 4, u + 4, q0)
                pk("v_pk_fma_f32", q1, u + 6, u + 6, q1)
            else:
                for j in range(4):
                    aa = a0 if j % 2 == 0 else a1
                    qq = q0 if j % 2 == 0 else q1
                    pk("v_pk_add_f32", aa, aa, u + 2 * j)
                    pk("v_pk_fma_f32", qq, u + 2 * j, u + 2 * j, qq)
        pk("v_pk_add_f32", a0, a0, a1)
        pk("v_pk_add_f32", q0, q0, q1)
        A(f"    v_add_f32 v{a0}, v{a0}, v{a0+1}")
        A(f"    v_add_f32 v{q0}, v{q0}, v{q0+1}")
        A(f"    v_mov_b32 v{t}, 0x3727c5ac")
        x, y = (a0, q0), (a0 + 1, q0 + 1)
        for i, n in enumerate((8, 4, 2, 1)):
            if i: A("    s_nop 0")
            s_, d_ = (x, y) if i % 2 == 0 else (y, x)
            dppadd(d_[0], s_[0], n)
            dppadd(d_[1], s_[1], n)
        A(f"    v_mul_f32 v{m}, 0x3b000000, v{a0}")
        A(f"    v_fmac_f32 v{t}, 0x3b000000, v{q0}")
        A(f"    v_fma_f32 v{t}, -v{m}, v{m}, v{t}")
        A(f"    v_max_f32 v{t}, 0x3727c5ac, v{t}")
        A(f"    v_rsq_f32 v{t}, v{t}")
        gbsel(g)
        A(f"    v_mul_f32 v{sc}, v{t}, v{GB}")
        A(f"    v_fma_f32 v{GB+1}, -v{m}, v{sc}, v{GB+1}")
        def norm(k):
            for i in range(4 * k, 4 * k + 4):
                u = U0 + 2 * i
                A(f"    v_pk_fma_f32 v[{u}:{u+1}], v[{u}:{u+1}], v[{sc}:{sc+1}], v[{GB}:{GB+1}] op_sel:[0,0,1] op_sel_hi:[1,0,1]")
            for i in range(4 * k, 4 * k + 4):
                u = U0 + 2 * i
                A(f"    v_cvt_pk_bf16_f32 v{R+i}, v{u}, v{u+1}")
        def store(k, g=g):
            r = R0 + 16 * g + 4 * k
            off = f" offset:{k*256}" if k else ""
            if not a.nost: A(f"    buffer_store_dwordx4 v[{r}:{r+3}], v1, s[16:19], {'s23' if a.loc == 4 else soff(g)} offen{off}{st}")
        if a.sync in (2, 4):
            if g < ng - 1:
                for k in range(4): norm(k)
            else:
                for k in range(a.bpos): norm(k)
                if a.sync == 2: A("    s_barrier")
                else:
                    A("L_gate:")
                    A(f"    ds_read_b32 v{FO}, v{FP}")
                    A("    s_waitcnt lgkmcnt(0)")
                    A(f"    v_cmp_ne_u32 vcc, 0, v{FO}")
                    A(f"    s_and_b32 s26, vcc_lo, {(1 << wpb) - 1}")
                    A("    s_bcnt1_i32_b32 s26, s26")
                    A(f"    s_cmp_lt_u32 s26, {a.thr}")
                    A("    s_cbranch_scc1 L_gate")
                for g2 in range(ng - 1):
                    for k in range(4): store(k, g2)
                for k in range(4):
                    if k >= a.bpos: norm(k)
                    store(k)
        else:
            for k in range(4):
                norm(k); store(k)
            nst += 4
    A("@ENDMAIN")
    if stamp == 2:
        if a.ev == "stiss": A("    s_memrealtime s[42:43]")
        A("    s_waitcnt vmcnt(0)")
        if a.ev == "done": A("    s_memrealtime s[42:43]")
        A("    s_mov_b64 exec, 1")
        A("    v_mov_b32 v1, 0")
        A("    s_waitcnt lgkmcnt(0)")
        A(f"    s_mov_b32 s61, s{40 if a.ev == 'start' else 42}")
        A("L_poll:")
        A("    buffer_load_dword v2, v1, s[48:51], 0 offen sc0 sc1")
        A("    s_waitcnt vmcnt(0)")
        A("    v_readfirstlane_b32 s54, v2")
        A("    s_cmp_eq_u32 s54, 0")
        A("    s_cbranch_scc1 L_poll")
        A("    s_sub_u32 s55, s61, s54")
        A("    s_max_i32 s55, s55, 0")
        A("    s_min_u32 s55, s55, 3000")
        if a.xsel >= 0:
            A("    s_and_b32 s60, s2, 7")
            A(f"    s_cmp_eq_u32 s60, {a.xsel}")
            A("    s_cselect_b32 s55, s55, 0")
        if a.wsel >= 0:
            A(f"    s_cmp_eq_u32 s24, {a.wsel}")
            A("    s_cselect_b32 s55, s55, 0")
        A(f"    s_mul_i32 s55, s55, {a.amp}")
        A("L_spin:")
        A("    s_sleep 8")
        A("    s_memrealtime s[52:53]")
        A("    s_waitcnt lgkmcnt(0)")
        A("    s_sub_u32 s53, s52, s54")
        A("    s_cmp_lt_u32 s53, s55")
        A("    s_cbranch_scc1 L_spin")
    A("L_end:")
    A("    s_endpgm")
    def expand(L, nslots, w0):
        J = []
        nw = wpb - w0
        for w in range(min(nslots, nw)):
            J.append(f"    s_cmp_eq_u32 s24, {w0 + w}")
            J.append(f"    s_cbranch_scc1 S{w}")
        out = []
        for l in L:
            if l == "@JUMPS": out += J
            else: out.append(l)
        return out
    if a.slots:
        g = a.sgran; nw = wpb - a.w0
        ns = 1
        while True:
            B = expand(L, ns, a.w0)
            body = [l for l in B if not l.startswith("@")]
            dummy = [f"S{w}:" for w in range(ns)]
            offs = sizes(body + dummy)[:len(body)]
            out = []; i = 0; inmain = False; extra = 0; cur = None; n = 0
            prev = ""
            for l in B:
                if l == "@MAIN": inmain = True; cur = (offs[i] + extra) // g; continue
                if l == "@ENDMAIN": inmain = False; continue
                o = offs[i] + extra
                if inmain and l.startswith("    ") and o // g > cur and not prev.strip().startswith("s_nop"):
                    cur = o // g
                    out.append(f"S{n}:"); out.append(f"@SLOT {n}"); n += 1; extra += 4
                out.append(l); i += 1; prev = l
            if n == ns: break
            ns = n
        fin = []
        for l in out:
            if l.startswith("@SLOT"):
                k = int(l.split()[1])
                tgt = f"S{k+nw}" if k + nw < ns else "L_back"
                fin.append(f"    s_cbranch_scc1 {tgt}")
            else: fin.append(l)
        L = fin
    else:
        L = [l for l in L if not l.startswith("@")]
    H = [HEADER.rstrip(), f"; @launch grid=({nwg*(2 if a.half or a.split else 1)},1,1) block=({64*wpb},1,1) lds={256*wpb if a.sync == 4 else 0}",
         '.amdgcn_target "amdgcn-amd-amdhsa--gfx950"', ".text", f".globl {NAME}", ".p2align 8",
         f".type {NAME},@function", f"{NAME}:"]
    nv4 = (nv + 3) // 4 * 4
    T = ['.section .rodata,"a"', ".p2align 6", f".amdhsa_kernel {NAME}",
         f"  .amdhsa_next_free_vgpr {nv}", "  .amdhsa_next_free_sgpr 96", f"  .amdhsa_accum_offset {nv4}",
         "  .amdhsa_group_segment_fixed_size 0", "  .amdhsa_kernarg_size 48", "  .amdhsa_user_sgpr_count 2",
         "  .amdhsa_user_sgpr_kernarg_segment_ptr 1", "  .amdhsa_system_sgpr_workgroup_id_x 1",
         "  .amdhsa_float_denorm_mode_32 3", ".end_amdhsa_kernel"]
    return "\n".join(H + L + T) + "\n"

if __name__ == "__main__":
    p = argparse.ArgumentParser()
    p.add_argument("--ld", default=""); p.add_argument("--st", default="")
    p.add_argument("--stamp", type=int, default=0)
    p.add_argument("--wpb", type=int, default=10)
    p.add_argument("--ng", type=int, default=1)
    p.add_argument("--nold", type=int, default=0)
    p.add_argument("--nost", type=int, default=0)
    p.add_argument("--empty", type=int, default=0)
    p.add_argument("--mix", type=int, default=0)
    p.add_argument("--loc", type=int, default=0)
    p.add_argument("--flip", type=int, default=0)
    p.add_argument("--flip2", type=int, default=0)
    p.add_argument("--half", type=int, default=0)
    p.add_argument("--split", type=int, default=0)
    p.add_argument("--thr", type=int, default=10)
    p.add_argument("--sigk", type=int, default=3)
    p.add_argument("--sync", type=int, default=0)
    p.add_argument("--bpos", type=int, default=1)
    p.add_argument("--ev", default="done")
    p.add_argument("--ref", type=int, default=2)
    p.add_argument("--xsel", type=int, default=-1)
    p.add_argument("--wsel", type=int, default=-1)
    p.add_argument("--amp", type=int, default=50)
    p.add_argument("--slots", type=int, default=0)
    p.add_argument("--sgran", type=int, default=128)
    p.add_argument("--jpos", type=int, default=1)
    p.add_argument("--w0", type=int, default=0)
    p.add_argument("--pcpf", type=int, default=0)
    p.add_argument("--pcn", type=int, default=9)
    p.add_argument("-o", default="-")
    a = p.parse_args()
    s = gen(a)
    if a.o == "-": sys.stdout.write(s)
    else: open(a.o, "w").write(s)
```

```python
import sys, argparse, subprocess, re, os, tempfile
from gen import HEADER, NAME, NINST, XBYTES

def sizes(lines):
    src = '.amdgcn_target "amdgcn-amd-amdhsa--gfx950"\n.text\n' + "\n".join(lines) + "\n"
    with tempfile.TemporaryDirectory() as d:
        open(d + "/a.s", "w").write(src)
        subprocess.run(["clang", "-c", "-x", "assembler", "-target", "amdgcn-amd-amdhsa", "-mcpu=gfx950", d + "/a.s", "-o", d + "/a.o"], check=True)
        out = subprocess.run(["llvm-objdump", "-d", d + "/a.o"], capture_output=True, text=True).stdout
    offs = [int(m.group(1), 16) for m in re.finditer(r"// ([0-9A-F]{12}):", out)]
    res = []; i = 0
    for l in lines:
        res.append(offs[i] if i < len(offs) else None)
        if l.startswith("    "): i += 1
    assert i == len(offs), (i, len(offs))
    return res

def gen(a):
    fl = lambda s: (" " + s.replace("+", " ")) if s else ""
    st, ld = fl(a.st), fl(a.ld)
    wpb = a.wpb; ng = a.ng; nwg = 2560 // (wpb * ng); tpw = wpb * ng
    assert 160 % tpw == 0 and (160 // tpw) & (160 // tpw - 1) == 0
    stamp = a.stamp
    bw = wpb + (1 if a.drop else 0)
    L = []; A = L.append
    GB = 4; R0 = 8; U0 = R0 + 16 * ng; T0 = U0 + 32
    if stamp: A("    s_memrealtime s[40:41]")
    if a.pcpf == 1:
        A("    s_getpc_b64 s[64:65]")
    A("    s_load_dwordx2 s[12:13], s[0:1], 0")
    if a.split:
        A("    s_bfe_u32 s90, s2, 0x10003")
        A("    s_and_b32 s3, s2, 7")
        A("    s_lshr_b32 s2, s2, 4")
        A("    s_lshl_b32 s2, s2, 3")
        A("    s_or_b32 s2, s2, s3")
    if a.half:
        A("    s_and_b32 s3, s2, 1")
        A("    s_cbranch_scc1 L_end")
        A("    s_lshr_b32 s2, s2, 1")
    A(f"    s_cmpk_ge_u32 s2, {0 if a.empty else nwg}")
    A("    s_cbranch_scc1 L_end")
    if a.pcpf == 1:
        for i in range(a.pcn):
            A(f"    s_load_dword s66, s[64:65], {128*(i+1)}")
    if a.loc:
        assert wpb == 10 and ng == 1
        A("    s_load_dwordx2 s[20:21], s[0:1], 40")
        A("    v_lshrrev_b32 v4, 6, v0")
        A("    s_lshr_b32 s25, s2, 3")
        A("    v_readfirstlane_b32 s24, v4")
        A("    s_lshl_b32 s25, s25, 2")
        A("    s_and_b32 s26, s2, 3")
        A("    s_add_u32 s25, s25, s26")
        A("    s_mul_i32 s25, s25, 5")
        A("    s_lshr_b32 s26, s24, 1")
        A("    s_add_u32 s25, s25, s26")
        A("    s_lshr_b32 s26, s25, 7")
        A(f"    s_add_u32 s26, s26, {8 if a.loc == 2 else 0}")
        A("    s_waitcnt lgkmcnt(0)")
        A("    s_load_dword s22, s[20:21], 128")
        A("    s_lshl_b32 s25, s25, 2")
        A("    s_and_b32 s27, s24, 1")
        A("    s_add_u32 s25, s25, s27")
        A("    s_lshr_b32 s27, s2, 2")
        A(f"    s_xor_b32 s27, s27, {1 ^ a.flip}")
        A("    v_and_b32 v0, 63, v0")
        A("    s_waitcnt lgkmcnt(0)")
        if a.loc == 3: A("    s_mov_b32 s22, 0")
        A("    s_lshr_b32 s22, s22, s26")
        if a.loc == 4:
            A("    s_lshr_b32 s23, s22, 8")
            A("    s_xor_b32 s23, s23, s27")
            A(f"    s_xor_b32 s23, s23, {a.flip ^ a.flip2}")
            A("    s_and_b32 s23, s23, 1")
            A("    s_lshl_b32 s23, s23, 1")
            A("    s_add_u32 s23, s25, s23")
            A("    s_lshl_b32 s23, s23, 12")
        A("    s_xor_b32 s22, s22, s27")
        A("    s_and_b32 s22, s22, 1")
        A("    s_lshl_b32 s22, s22, 1")
        A("    s_add_u32 s25, s25, s22")
        A("    s_lshl_b32 s3, s25, 12")
    elif a.drop:
        assert ng == 1
        A("    v_lshrrev_b32 v4, 6, v0")
        A("    s_and_b32 s25, s2, 7")
        A("    v_readfirstlane_b32 s24, v4")
        A(f"    s_cselect_b32 s26, {wpb}, {wpb-a.drop}")
        A(f"    v_lshlrev_b32 v{T0+14}, 2, v0")
        A("    v_and_b32 v0, 63, v0")
        A("    s_cmp_lt_u32 s24, s26")
        A("    s_cbranch_scc0 L_rare")
        A("L_norm:")
        A(f"    s_mul_i32 s3, s2, {wpb}")
        A("    s_add_u32 s3, s3, s24")
        A("    s_lshl_b32 s3, s3, 12")
    else:
        A(f"    s_mul_i32 s3, s2, {tpw*4096}")
    for g in range(1, ng): A(f"    s_add_u32 s{30+g}, s3, {g*4096*wpb}")
    soff = lambda g: "s3" if g == 0 else f"s{30+g}"
    A("    s_lshl_b32 s14, 5, 21")
    A("    s_lshl_b32 s15, 1, 17")
    A("    v_and_b32 v3, 15, v0")
    if a.pcpf == 2:
        A("    s_getpc_b64 s[64:65]")
        A(f"    v_min_u32 v5, {a.pcn-1}, v3")
        A("    v_lshlrev_b32 v5, 7, v5")
        A("    global_load_dword v6, v5, s[64:65] offset:64")
    A("    v_lshlrev_b32 v1, 6, v0")
    A("    v_mul_u32_u24 v3, 48, v3")
    A("    v_sub_u32 v1, v1, v3")
    done = set()
    def once(x):
        if x not in done: done.add(x); A(x)
    def srds():
        once("    s_load_dwordx2 s[16:17], s[0:1], 24")
        if stamp: once(f"    s_load_dwordx2 s[48:49], s[0:1], {40 if stamp == 6 else 32}")
        once("    s_mov_b32 s18, s14")
        once("    s_mov_b32 s19, s15")
        if stamp:
            once("    s_mov_b32 s50, 256")
            once("    s_mov_b32 s51, s15")
    def jumps():
        if a.slots: srds()
        if not (a.loc or a.drop): A("    v_lshrrev_b32 v4, 6, v0")
        A("    v_and_b32 v2, 0x30, v0")
        if not (a.loc or a.drop): A("    v_readfirstlane_b32 s24, v4")
        if a.slots:
            A("@JUMPS")
            A("L_back:")
    if a.jpos == 0: jumps()
    A("    s_waitcnt lgkmcnt(0)")
    if stamp and a.ev == "karg": A("    s_memrealtime s[42:43]")
    if a.split:
        A("    s_cmp_eq_u32 s90, 1")
        A("    s_cbranch_scc1 L_nold")
    for g in range(ng):
      for k in range(4):
        r = R0 + 16 * g + 4 * k
        off = f" offset:{k*256}" if k else ""
        if not a.nold: A(f"    buffer_load_dwordx4 v[{r}:{r+3}], v1, s[12:15], {soff(g)} offen{off}{ld}")
    if a.split:
        A("    s_waitcnt vmcnt(0)")
        A("    s_endpgm")
        A("L_nold:")
    if stamp and a.ev == "ldiss": A("    s_memrealtime s[42:43]")
    A("    s_load_dwordx4 s[4:7], s[0:1], 8")
    srds()
    if a.jpos == 1: jumps()
    if a.jpos == 2:
        A("    v_lshrrev_b32 v4, 6, v0")
        A("    v_and_b32 v2, 0x30, v0")
        A("    v_readfirstlane_b32 s24, v4")
    if a.loc:
        A(f"    s_mul_hi_u32 s28, s25, {(1 << 32) // 160 + 1}")
        A("    s_mul_i32 s28, s28, 160")
        A("    s_sub_u32 s28, s25, s28")
    else:
        A(f"    s_and_b32 s28, s2, {160//tpw-1}")
        A(f"    s_mul_i32 s28, s28, {tpw}")
        A("    s_add_u32 s28, s28, s24")
    A("    s_lshl_b32 s28, s28, 3")
    A("    s_mov_b32 s29, 0xffff0000")
    FA, FP, FO = T0 + 14, T0 + 15, T0 + 16
    if a.sync == 4:
        if not a.drop: A(f"    v_lshlrev_b32 v{FA}, 2, v0")
        A(f"    v_mov_b32 v{FO}, 0")
        A(f"    v_and_b32 v{FP}, 63, v0")
        A(f"    ds_write_b32 v{FA}, v{FO}")
        A(f"    v_min_u32 v{FP}, {bw-1}, v{FP}")
        A(f"    v_lshlrev_b32 v{FP}, 8, v{FP}")
    A("    s_waitcnt lgkmcnt(0)")
    if a.sync == 4: A(f"    v_mov_b32 v{FO}, 1")
    for g in range(ng):
        if g: A(f"    s_add_u32 s28, s28, {8*wpb}")
        A(f"    s_load_dwordx2 s[{68+4*g}:{69+4*g}], s[4:5], s28")
        A(f"    s_load_dwordx2 s[{70+4*g}:{71+4*g}], s[6:7], s28")
    if stamp in (2, 6):
        A(f"    s_cmp_lg_u32 s2, {a.ref}")
        A("    s_cbranch_scc1 L_noref")
        A("    s_cmp_lg_u32 s24, 0")
        A("    s_cbranch_scc1 L_noref")
        A("    s_or_b32 s62, s40, 1")
        A(f"    v_mov_b32 v{T0}, s62")
        A(f"    v_mov_b32 v{T0+1}, 0")
        A(f"    buffer_store_dword v{T0}, v{T0+1}, s[48:51], 0 offen sc0 sc1")
        if stamp == 2: A("    s_waitcnt vmcnt(0)")
        A("L_noref:")
    if a.jpos == 2:
        A("@JUMPS")
        A("L_back:")
    if a.slots: A("    s_cmp_eq_u32 s15, 0")
    if a.mix == 9:
        A("    s_waitcnt vmcnt(0)")
        A("    s_endpgm")
    if a.mix:
        for g in range(ng):
            for k in range(4):
                off = f" offset:{k*256}" if k else ""
                if a.mix == 2: A(f"    s_waitcnt vmcnt({4*ng-1})")
                A(f"    buffer_store_dwordx4 v[{U0}:{U0+3}], v1, s[16:19], {'s23' if a.loc == 4 else soff(g)} offen{off}{st}")
        A("    s_waitcnt vmcnt(0)")
        A("    s_endpgm")
    A("@MAIN")
    a0, a1 = T0, T0 + 2
    q0, q1 = T0 + 4, T0 + 6
    m = T0 + 8; sc = T0 + 10; t = T0 + 12; nv = T0 + (17 if a.sync == 4 or a.drop else 14)
    def pk(op, d, s0, s1, s2=None, mods=""):
        if s2 is None: A(f"    {op} v[{d}:{d+1}], v[{s0}:{s0+1}], v[{s1}:{s1+1}]{mods}")
        else: A(f"    {op} v[{d}:{d+1}], v[{s0}:{s0+1}], v[{s1}:{s1+1}], v[{s2}:{s2+1}]{mods}")
    def dppadd(d, s, n):
        A(f"    v_add_f32_dpp v{d}, v{s}, v{s} row_ror:{n} row_mask:0xf bank_mask:0xf")
    def gbsel(g):
        if g == 0: A("    s_waitcnt lgkmcnt(0)")
        A(f"    v_lshrrev_b64 v[{GB}:{GB+1}], v2, s[{68+4*g}:{69+4*g}]")
        A(f"    v_lshrrev_b64 v[{GB+2}:{GB+3}], v2, s[{70+4*g}:{71+4*g}]")
        A(f"    v_lshlrev_b32 v{GB}, 16, v{GB}")
        A(f"    v_lshlrev_b32 v{GB+1}, 16, v{GB+2}")
    nst = 0
    for g in range(ng):
        R = R0 + 16 * g
        xw = 0
        for k in range(4):
            A(f"    s_waitcnt vmcnt({4*(ng-g)-1-k+nst})")
            if a.sync == 4 and g == ng - 1 and k == a.sigk: A(f"    ds_write_b32 v{FA}, v{FO}")
            if stamp and g == 0 and k == 0 and a.ev == "data0": A("    s_memrealtime s[42:43]")
            if stamp and g == ng-1 and k == 3 and a.ev == "data": A("    s_memrealtime s[42:43]")
            for i in range(4 * k, 4 * k + 4):
                A(f"    v_lshlrev_b32 v{U0+2*i}, 16, v{R+i}")
                A(f"    v_and_b32 v{U0+2*i+1}, s29, v{R+i}")
                if k == 0 and i == 1:
                    A(f"    v_mov_b32_dpp v{m}, v{U0} row_newbcast:0 row_mask:0xf bank_mask:0xf")
            u = U0 + 8 * k
            for j in range(4):
                pk("v_pk_add_f32", u + 2 * j, u + 2 * j, m, mods=" op_sel_hi:[1,0] neg_lo:[0,1] neg_hi:[0,1]")
            if k == 0:
                pk("v_pk_add_f32", a0, u, u + 2)
                pk("v_pk_mul_f32", q0, u, u)
                pk("v_pk_add_f32", a1, u + 4, u + 6)
                pk("v_pk_mul_f32", q1, u + 2, u + 2)
                pk("v_pk_fma_f32", q0, u + 4, u + 4, q0)
                pk("v_pk_fma_f32", q1, u + 6, u + 6, q1)
            else:
                for j in range(4):
                    aa = a0 if j % 2 == 0 else a1
                    qq = q0 if j % 2 == 0 else q1
                    pk("v_pk_add_f32", aa, aa, u + 2 * j)
                    pk("v_pk_fma_f32", qq, u + 2 * j, u + 2 * j, qq)
        pk("v_pk_add_f32", a0, a0, a1)
        pk("v_pk_add_f32", q0, q0, q1)
        A(f"    v_add_f32 v{a0}, v{a0}, v{a0+1}")
        A(f"    v_add_f32 v{q0}, v{q0}, v{q0+1}")
        A(f"    v_mov_b32 v{t}, 0x3727c5ac")
        x, y = (a0, q0), (a0 + 1, q0 + 1)
        for i, n in enumerate((8, 4, 2, 1)):
            if i: A("    s_nop 0")
            s_, d_ = (x, y) if i % 2 == 0 else (y, x)
            dppadd(d_[0], s_[0], n)
            dppadd(d_[1], s_[1], n)
        A(f"    v_mul_f32 v{m}, 0x3b000000, v{a0}")
        A(f"    v_fmac_f32 v{t}, 0x3b000000, v{q0}")
        A(f"    v_fma_f32 v{t}, -v{m}, v{m}, v{t}")
        A(f"    v_max_f32 v{t}, 0x3727c5ac, v{t}")
        A(f"    v_rsq_f32 v{t}, v{t}")
        gbsel(g)
        A(f"    v_mul_f32 v{sc}, v{t}, v{GB}")
        A(f"    v_fma_f32 v{GB+1}, -v{m}, v{sc}, v{GB+1}")
        def norm(k):
            for i in range(4 * k, 4 * k + 4):
                u = U0 + 2 * i
                A(f"    v_pk_fma_f32 v[{u}:{u+1}], v[{u}:{u+1}], v[{sc}:{sc+1}], v[{GB}:{GB+1}] op_sel:[0,0,1] op_sel_hi:[1,0,1]")
            for i in range(4 * k, 4 * k + 4):
                u = U0 + 2 * i
                A(f"    v_cvt_pk_bf16_f32 v{R+i}, v{u}, v{u+1}")
        def store(k, g=g):
            r = R0 + 16 * g + 4 * k
            off = f" offset:{k*256}" if k else ""
            if not a.nost: A(f"    buffer_store_dwordx4 v[{r}:{r+3}], v1, s[16:19], {'s23' if a.loc == 4 else soff(g)} offen{off}{st}")
        if a.sync in (2, 4):
            if g < ng - 1:
                for k in range(4): norm(k)
            else:
                for k in range(a.bpos): norm(k)
                if a.sync == 2: A("    s_barrier")
                else:
                    def chk(thr, cond, lab):
                        A(f"    ds_read_b32 v{FO}, v{FP}")
                        A("    s_waitcnt lgkmcnt(0)")
                        A(f"    v_cmp_ne_u32 vcc, 0, v{FO}")
                        A(f"    s_and_b32 s26, vcc_lo, {(1 << bw) - 1}")
                        A("    s_bcnt1_i32_b32 s26, s26")
                        A(f"    s_cmp_lt_u32 s26, {thr + bw - wpb}")
                        A(f"    s_cbranch_scc{cond} {lab}")
                    if a.trk:
                        assert ng == 1 and a.bpos == 4
                        if a.thr0:
                            A("L_gate0:")
                            chk(a.thr0, 1, "L_gate0")
                        for k in range(a.trk):
                            chk(a.thr, 0, f"L_b{k}")
                            store(k)
                            A("    s_waitcnt vmcnt(0)")
                    if a.trk < 4:
                        A("L_gate:")
                        chk(a.thr, 1, "L_gate")
                    if a.trk: A(f"    s_branch L_b{a.trk}")
                for g2 in range(ng - 1):
                    for k in range(4): store(k, g2)
                for k in range(4):
                    if k >= a.bpos: norm(k)
                    if a.trk: A(f"L_b{k}:")
                    store(k)
                if a.trk: A("L_b4:")
        else:
            for k in range(4):
                norm(k); store(k)
            nst += 4
    A("@ENDMAIN")
    if stamp == 2:
        if a.ev == "stiss": A("    s_memrealtime s[42:43]")
        A("    s_waitcnt vmcnt(0)")
        if a.ev == "done": A("    s_memrealtime s[42:43]")
        A("    s_mov_b64 exec, 1")
        A("    v_mov_b32 v1, 0")
        A("    s_waitcnt lgkmcnt(0)")
        A(f"    s_mov_b32 s61, s{40 if a.ev == 'start' else 42}")
        A("L_poll:")
        A("    buffer_load_dword v2, v1, s[48:51], 0 offen sc0 sc1")
        A("    s_waitcnt vmcnt(0)")
        A("    v_readfirstlane_b32 s54, v2")
        A("    s_cmp_eq_u32 s54, 0")
        A("    s_cbranch_scc1 L_poll")
        A("    s_sub_u32 s55, s61, s54")
        A("    s_max_i32 s55, s55, 0")
        A("    s_min_u32 s55, s55, 3000")
        if a.xsel >= 0:
            A("    s_and_b32 s60, s2, 7")
            A(f"    s_cmp_eq_u32 s60, {a.xsel}")
            A("    s_cselect_b32 s55, s55, 0")
        if a.wsel >= 0:
            A(f"    s_cmp_eq_u32 s24, {a.wsel}")
            A("    s_cselect_b32 s55, s55, 0")
        A(f"    s_mul_i32 s55, s55, {a.amp}")
        A("L_spin:")
        A("    s_sleep 8")
        A("    s_memrealtime s[52:53]")
        A("    s_waitcnt lgkmcnt(0)")
        A("    s_sub_u32 s53, s52, s54")
        A("    s_cmp_lt_u32 s53, s55")
        A("    s_cbranch_scc1 L_spin")
    A("L_end:")
    A("    s_endpgm")
    if a.drop:
        A("L_rare:")
        A("    s_cmp_eq_u32 s25, 0")
        A("    s_cbranch_scc1 L_quit")
        A("    s_lshr_b32 s26, s2, 3")
        A("    s_mul_i32 s27, s26, 37")
        A("    s_lshr_b32 s27, s27, 8")
        A("    s_mul_i32 s27, s27, 7")
        A("    s_sub_u32 s26, s26, s27")
        A("    s_sub_u32 s25, s25, s26")
        A("    s_add_u32 s26, s25, 7")
        A("    s_cmp_gt_i32 s25, 0")
        A("    s_cselect_b32 s25, s25, s26")
        A(f"    s_cmp_gt_u32 s25, {a.drop}")
        A("    s_cbranch_scc1 L_quit")
        A(f"    s_sub_u32 s24, {wpb}, s25")
        A("    s_and_b32 s2, s2, -8")
        A("    s_branch L_norm")
        A("L_quit:")
        if a.sync == 4:
            A(f"    v_mov_b32 v{FO}, 1")
            A(f"    ds_write_b32 v{FA}, v{FO}")
            A("    s_waitcnt lgkmcnt(0)")
        A("    s_endpgm")
    def expand(L, nslots, w0):
        J = []
        nw = wpb - w0
        for w in range(min(nslots, nw)):
            J.append(f"    s_cmp_eq_u32 s24, {w0 + w}")
            J.append(f"    s_cbranch_scc1 S{w}")
        out = []
        for l in L:
            if l == "@JUMPS": out += J
            else: out.append(l)
        return out
    if a.slots:
        g = a.sgran; nw = wpb - a.w0
        ns = 1
        while True:
            B = expand(L, ns, a.w0)
            body = [l for l in B if not l.startswith("@")]
            dummy = [f"S{w}:" for w in range(ns)]
            offs = sizes(body + dummy)[:len(body)]
            out = []; i = 0; inmain = False; extra = 0; cur = None; n = 0
            prev = ""
            for l in B:
                if l == "@MAIN": inmain = True; cur = (offs[i] + extra) // g; continue
                if l == "@ENDMAIN": inmain = False; continue
                o = offs[i] + extra
                if inmain and l.startswith("    ") and o // g > cur and not prev.strip().startswith("s_nop"):
                    cur = o // g
                    out.append(f"S{n}:"); out.append(f"@SLOT {n}"); n += 1; extra += 4
                out.append(l); i += 1; prev = l
            if n == ns: break
            ns = n
        fin = []
        for l in out:
            if l.startswith("@SLOT"):
                k = int(l.split()[1])
                tgt = f"S{k+nw}" if k + nw < ns else "L_back"
                fin.append(f"    s_cbranch_scc1 {tgt}")
            else: fin.append(l)
        L = fin
    else:
        L = [l for l in L if not l.startswith("@")]
    H = [HEADER.rstrip(), f"; @launch grid=({nwg*(2 if a.half or a.split else 1)},1,1) block=({64*bw},1,1) lds={256*bw if a.sync == 4 else 0}",
         '.amdgcn_target "amdgcn-amd-amdhsa--gfx950"', ".text", f".globl {NAME}", ".p2align 8",
         f".type {NAME},@function", f"{NAME}:"]
    nv4 = (nv + 3) // 4 * 4
    T = ['.section .rodata,"a"', ".p2align 6", f".amdhsa_kernel {NAME}",
         f"  .amdhsa_next_free_vgpr {nv}", "  .amdhsa_next_free_sgpr 96", f"  .amdhsa_accum_offset {nv4}",
         "  .amdhsa_group_segment_fixed_size 0", "  .amdhsa_kernarg_size 48", "  .amdhsa_user_sgpr_count 2",
         "  .amdhsa_user_sgpr_kernarg_segment_ptr 1", "  .amdhsa_system_sgpr_workgroup_id_x 1",
         "  .amdhsa_float_denorm_mode_32 3", ".end_amdhsa_kernel"]
    return "\n".join(H + L + T) + "\n"

if __name__ == "__main__":
    p = argparse.ArgumentParser()
    p.add_argument("--ld", default=""); p.add_argument("--st", default="")
    p.add_argument("--stamp", type=int, default=0)
    p.add_argument("--wpb", type=int, default=10)
    p.add_argument("--ng", type=int, default=1)
    p.add_argument("--nold", type=int, default=0)
    p.add_argument("--nost", type=int, default=0)
    p.add_argument("--empty", type=int, default=0)
    p.add_argument("--mix", type=int, default=0)
    p.add_argument("--loc", type=int, default=0)
    p.add_argument("--flip", type=int, default=0)
    p.add_argument("--flip2", type=int, default=0)
    p.add_argument("--half", type=int, default=0)
    p.add_argument("--split", type=int, default=0)
    p.add_argument("--thr", type=int, default=10)
    p.add_argument("--sigk", type=int, default=3)
    p.add_argument("--drop", type=int, default=0)
    p.add_argument("--trk", type=int, default=0)
    p.add_argument("--thr0", type=int, default=0)
    p.add_argument("--sync", type=int, default=0)
    p.add_argument("--bpos", type=int, default=1)
    p.add_argument("--ev", default="done")
    p.add_argument("--ref", type=int, default=2)
    p.add_argument("--xsel", type=int, default=-1)
    p.add_argument("--wsel", type=int, default=-1)
    p.add_argument("--amp", type=int, default=50)
    p.add_argument("--slots", type=int, default=0)
    p.add_argument("--sgran", type=int, default=128)
    p.add_argument("--jpos", type=int, default=1)
    p.add_argument("--w0", type=int, default=0)
    p.add_argument("--pcpf", type=int, default=0)
    p.add_argument("--pcn", type=int, default=9)
    p.add_argument("-o", default="-")
    a = p.parse_args()
    s = gen(a)
    if a.o == "-": sys.stdout.write(s)
    else: open(a.o, "w").write(s)
```
